```python
import torch

def _softmax(x, axis=-1):
    return torch.softmax(x, dim=axis)

def _gelu(x):
    return torch.nn.functional.gelu(x, approximate='tanh')

def _silu(x):
    return torch.nn.functional.silu(x)

def _sigmoid(x):
    return torch.sigmoid(x)

def _layernorm(x, axis=-1, eps=1e-05):
    m = x.mean(dim=axis, keepdim=True)
    v = x.var(dim=axis, keepdim=True, unbiased=False)
    return (x - m) / torch.sqrt(v + eps)

def _scatter_add(tgt, idx, src, axis=0):
    return tgt.clone().index_add_(axis, idx, src)

def _segment_sum(src, seg, n):
    out = torch.zeros((n,) + src.shape[1:], dtype=src.dtype)
    return out.index_add_(0, seg, src)

def _pad(x, pw):
    flat = tuple((v for pair in reversed(pw) for v in pair))
    return torch.nn.functional.pad(x, flat)
kernel_name = 'adaLN_cond__ssm_conv_s4__mixer_s_mlp__prompt'

def setup_inputs():

    _w = lambda a: (lambda t: t.to(torch.bfloat16) if t.is_floating_point() else t)(torch.as_tensor(a))

    def _A_setup():
        B, L, D, N = (1, 2048, 640, 128)
        A_re = -(lambda _x: torch.exp(torch.as_tensor(_x)))((lambda *s: torch.randn(*s, dtype=torch.bfloat16) * 3.2)(D, N))
        A_im = torch.pi * (lambda *s: torch.randn(*s, dtype=torch.bfloat16) * 0.1)(D, N)
        B_re = (lambda *s: torch.randn(*s, dtype=torch.bfloat16) * 0.2)(D, N)
        B_im = (lambda *s: torch.randn(*s, dtype=torch.bfloat16) * 0.2)(D, N)
        C_re = (lambda *s: torch.randn(*s, dtype=torch.bfloat16) * 0.2)(D, N)
        C_im = (lambda *s: torch.randn(*s, dtype=torch.bfloat16) * 0.2)(D, N)
        log_dt = (lambda *s: torch.randn(*s, dtype=torch.bfloat16) * 0.1)(D) * 0.5 - 4.0
        Dskip = (lambda *s: torch.randn(*s, dtype=torch.bfloat16) * 0.1)(D)
        return {'u': _w((lambda *s: torch.randn(*s, dtype=torch.bfloat16) * 0.05)(B, L, D)), 'A_re': _w(A_re), 'A_im': _w(A_im), 'B_re': _w(B_re), 'B_im': _w(B_im), 'C_re': _w(C_re), 'C_im': _w(C_im), 'log_dt': _w(log_dt), 'Dskip': _w(Dskip)}
    _A_in = _A_setup()

    def _B_setup():
        B, S, D, F = (1, 2048, 640, 1728)
        return {'x': _w((lambda *s: torch.randn(*s, dtype=torch.bfloat16) * 0.05)(B, S, D)), 'w1': _w((lambda *s: torch.randn(*s, dtype=torch.bfloat16) * 3.2)(D, D) * D ** (-0.5)), 'w2': _w((lambda *s: torch.randn(*s, dtype=torch.bfloat16) * 3.2)(D, D) * D ** (-0.5)), 'w3': _w((lambda *s: torch.randn(*s, dtype=torch.bfloat16) * 3.2)(D, F) * D ** (-0.5)), 'w4': _w((lambda *s: torch.randn(*s, dtype=torch.bfloat16) * 3.2)(F, D) * F ** (-0.5))}
    _B_in = _B_setup()
    return {'A_u': _A_in['u'], 'A_A_re': _A_in['A_re'], 'A_A_im': _A_in['A_im'], 'A_B_re': _A_in['B_re'], 'A_B_im': _A_in['B_im'], 'A_C_re': _A_in['C_re'], 'A_C_im': _A_in['C_im'], 'A_log_dt': _A_in['log_dt'], 'A_Dskip': _A_in['Dskip'], 'B_x': _B_in['x'], 'B_w1': _B_in['w1'], 'B_w2': _B_in['w2'], 'B_w3': _B_in['w3'], 'B_w4': _B_in['w4'], 'c': _w((lambda *s: torch.randn(*s, dtype=torch.bfloat16) * 0.1)(1, 640) * 8.0), 'w_mod': _w((lambda *s: torch.randn(*s, dtype=torch.bfloat16) * 0.1)(640, 6 * 640) * 640 ** (-0.5) * 8.0)}

def reference(A_u, A_A_re, A_A_im, A_B_re, A_B_im, A_C_re, A_C_im, A_log_dt, A_Dskip, B_x, B_w1, B_w2, B_w3, B_w4, c, w_mod):

    def _A_ref(u, A_re, A_im, B_re, B_im, C_re, C_im, log_dt, Dskip):
        Bsz, L, D = u.shape
        dt = torch.exp(log_dt)[:, None]
        A = A_re + 1j * A_im
        Bc = B_re + 1j * B_im
        Cc = C_re + 1j * C_im
        logdA = dt * A
        dB = dt * Bc
        l = (lambda x, dt: x.to(dt))(torch.arange(L), A_re.dtype)
        P = torch.exp(logdA[:, :, None] * l[None, None, :])
        K = torch.einsum('dn,dnl,dn->dl', Cc, P, dB).real
        L2 = 2 * L
        Kp = _pad(K, ((0, 0), (0, L)))
        up = (lambda x, *d: x.permute(*d))(u, 0, 2, 1)
        up = _pad(up, ((0, 0), (0, 0), (0, L)))
        Kf = (lambda x, axes=(-2, -1): torch.fft.rfft2(x.float(), dim=axes))(Kp[:, None, :], axes=(-2, -1))
        Uf = (lambda x, axes=(-2, -1): torch.fft.rfft2(x.float(), dim=axes))(up[:, :, None, :], axes=(-2, -1))
        Yf = Uf * Kf[None, :, :, :]
        y = (lambda x, s, axes=(-2, -1): torch.fft.irfft2(x, s=s, dim=axes).to(torch.bfloat16))(Yf, (1, L2), axes=(-2, -1))[:, :, 0, :L]
        y = (lambda x, *d: x.permute(*d))(y, 0, 2, 1) + u * Dskip[None, None, :]
        return y

    def _B_ref(x, w1, w2, w3, w4):
        B, S, D = x.shape
        h = _gelu(_layernorm(x, axis=-1) @ w1)
        c = D // 4
        g0 = _pad(h[:, :, 0 * c:1 * c], ((0, 0), (1, 0), (0, 0)))[:, :S, :]
        g1 = _pad(h[:, :, 1 * c:2 * c], ((0, 0), (0, 1), (0, 0)))[:, 1:, :]
        g2 = _pad(h[:, :, 2 * c:3 * c], ((0, 0), (2, 0), (0, 0)))[:, :S, :]
        g3 = _pad(h[:, :, 3 * c:], ((0, 0), (0, 2), (0, 0)))[:, 2:, :]
        hs = torch.concatenate([g0, g1, g2, g3], axis=-1) @ w2
        x1 = x + hs
        h2 = _gelu(_layernorm(x1, axis=-1) @ w3) @ w4
        return x1 + h2
    x = A_u
    mod = (_silu(c) @ w_mod).reshape(c.shape[0], 6, 1, -1)
    sa, ca, ga, sb, cb, gb = (mod[:, 0].clone(), mod[:, 1].clone(), mod[:, 2].clone(), mod[:, 3].clone(), mod[:, 4].clone(), mod[:, 5].clone())
    h = _layernorm(x, axis=-1) * (1 + ca) + sa
    x = x + ga * _A_ref(h, A_A_re, A_A_im, A_B_re, A_B_im, A_C_re, A_C_im, A_log_dt, A_Dskip)
    h = _layernorm(x, axis=-1) * (1 + cb) + sb
    x = x + gb * _B_ref(h, B_w1, B_w2, B_w3, B_w4)
    return x
```

```python
class A:
    def __init__(s): s.l=[]; s.n=0
    def __call__(s, *lines):
        for x in lines:
            for y in x.strip("\n").split("\n"):
                y=y.strip()
                if y: s.l.append(y if y.endswith(":") else "    "+y)
    def lab(s, p="L"):
        s.n+=1; return f"{p}_{s.n}"
    def txt(s): return "\n".join(s.l)+"\n"
def v(a,n=1): return f"v{a}" if n==1 else f"v[{a}:{a+n-1}]"
def sr(a,n=1): return f"s{a}" if n==1 else f"s[{a}:{a+n-1}]"
MODP=0x0; CS1=0x10000; CS3=0x11000; CSD=0x13000
TP=4224
ZT=0x100000; XT=0x400000; KR=0x700000
RP=2072; GP=RP*16; KP=4*GP
MODF=0x16000
X1F=0xA00000; H2F=0xD00000; GF=0x1000000; X2F=0x1300000; MF=0x1600000; FSZ=20*KP; MSZ=54*KP
KA=dict(u=0,Are=8,Aim=16,Bre=24,Bim=32,Cre=40,Cim=48,ldt=56,dsk=64,w1=80,w2=88,w3=96,w4=104,c=112,wmod=120,out=128,dbg=136,ws=144)
def srd(a, d, base, size, off=0):
    if off: a(f"s_add_u32 s{d}, s{base}, {off}", f"s_addc_u32 s{d+1}, s{base+1}, 0")
    else: a(f"s_mov_b32 s{d}, s{base}", f"s_mov_b32 s{d+1}, s{base+1}")
    a(f"s_mov_b32 s{d+2}, {size}", f"s_mov_b32 s{d+3}, 0x00020000")
def khead(name):
    return f".globl {name}\n.p2align 8\n.type {name},@function\n{name}:\n"
def kdesc(name, vg, sg=102, acc=None):
    vg=(vg+7)//8*8
    acc = acc or vg
    return f""".p2align 6
.amdhsa_kernel {name}
  .amdhsa_next_free_vgpr {vg}
  .amdhsa_next_free_sgpr {sg}
  .amdhsa_accum_offset {acc}
  .amdhsa_group_segment_fixed_size 0
  .amdhsa_kernarg_size 152
  .amdhsa_user_sgpr_count 2
  .amdhsa_user_sgpr_kernarg_segment_ptr 1
  .amdhsa_system_sgpr_workgroup_id_x 1
.end_amdhsa_kernel
"""
def dpp_row_sum(a, r, tmp=None):
    for sh in (8,4,2,1):
        a(f"s_nop 1", f"v_add_f32_dpp v{r}, v{r}, v{r} row_ror:{sh} row_mask:0xf bank_mask:0xf")
def cmul(a, d, x, y):
    a(f"v_pk_mul_f32 v[{d}:{d+1}], v[{x}:{x+1}], v[{y}:{y+1}] op_sel:[0,0] op_sel_hi:[0,1]",
      f"v_pk_fma_f32 v[{d}:{d+1}], v[{x}:{x+1}], v[{y}:{y+1}], v[{d}:{d+1}] op_sel:[1,1,0] op_sel_hi:[1,0,1] neg_lo:[0,1,0]")
def bfr(a, r):
    a(f"v_cvt_pk_bf16_f32 v{r}, v{r}, v{r}", f"v_lshlrev_b32 v{r}, 16, v{r}")
def lds_colreduce(a, acc, kkreg, ncreg, wave_s, outreg):
    a(f"v_lshlrev_b32 v5, 8, v{kkreg}", f"v_lshl_add_u32 v5, v{ncreg}, 5, v5")
    a(f"ds_write_b128 v5, v[{acc}:{acc+3}]", f"ds_write_b128 v5, v[{acc+4}:{acc+7}] offset:16","s_waitcnt lgkmcnt(0)","s_barrier")
    a("v_and_b32 v6, 63, v0","v_lshlrev_b32 v6, 2, v6",f"s_lshl_b32 s25, s{wave_s}, 11","v_add_u32 v7, s25, v6")
    for i in range(8): a(f"ds_read_b32 v{16+i}, v7 offset:{256*i}")
    a("s_waitcnt lgkmcnt(0)")
    for i in range(1,8): a(f"v_add_f32 v16, v16, v{16+i}")
    a(f"s_lshl_b32 s25, s{wave_s}, 8","v_add_u32 v7, s25, v6","ds_write_b32 v7, v16 offset:8192","s_waitcnt lgkmcnt(0)","s_barrier")
    for i in range(4): a(f"ds_read_b32 v{16+i}, v6 offset:{8192+256*i}")
    a("s_waitcnt lgkmcnt(0)","v_add_f32 v16, v16, v17","v_add_f32 v18, v18, v19",f"v_add_f32 v{outreg}, v16, v18")
import os
TICK=int(os.environ.get("TICK","0")); DBGW=0x2000000
def tick(a,i):
    if TICK: a(f"s_memtime s[{70+2*i}:{71+2*i}]")
def tick_end(a,li,n,wsreg=4):
    if not TICK: return
    lb=a.lab("TK")
    a(f"s_memtime s[{70+2*n}:{71+2*n}]","s_waitcnt lgkmcnt(0)","v_cmp_eq_u32 vcc, 0, v0",f"s_cbranch_vccz {lb}","s_and_saveexec_b64 s[68:69], vcc")
    a(f"s_add_u32 s60, s{wsreg}, {DBGW+li*0x10000}", f"s_addc_u32 s61, s{wsreg+1}, 0","s_mov_b32 s62, 0x10000","s_mov_b32 s63, 0x00020000","s_lshl_b32 s64, s2, 6")
    for i in range(n+1):
        if i: a(f"s_sub_u32 s{70+2*i}, s{70+2*i}, s70")
        a(f"v_mov_b32 v250, s{70+2*i}", f"buffer_store_dword v250, off, s[60:63], s64 offset:{4*i}","s_nop 1")
    a("s_mov_b64 exec, s[68:69]", f"{lb}:")
```

```python
import sys, importlib
from asmlib import *
def build(ks, out):
    mods=[importlib.import_module(k) for k in ks]
    s=""
    for m in mods: s+=f"; @launch kernel={m.NAME} grid=({m.NWG},1,1) block=({getattr(m,'BLK',256)},1,1) lds={m.LDS}\n"
    s+='.amdgcn_target "amdgcn-amd-amdhsa--gfx950"\n.text\n'
    d='.section .rodata,"a"\n'
    for m in mods:
        t,vg=m.gen()
        s+=khead(m.NAME)+t
        d+=kdesc(m.NAME,vg)
    open(out,"w").write(s+d)
if __name__=="__main__":
    build(sys.argv[2:], sys.argv[1])
```

```python
class A:
    def __init__(s): s.l=[]; s.n=0
    def __call__(s, *lines):
        for x in lines:
            for y in x.strip("\n").split("\n"):
                y=y.strip()
                if y: s.l.append(y if y.endswith(":") else "    "+y)
    def lab(s, p="L"):
        s.n+=1; return f"{p}_{s.n}"
    def txt(s): return "\n".join(s.l)+"\n"
def v(a,n=1): return f"v{a}" if n==1 else f"v[{a}:{a+n-1}]"
def sr(a,n=1): return f"s{a}" if n==1 else f"s[{a}:{a+n-1}]"
MODP=0x0; CS1=0x10000; CS3=0x11000; CSD=0x13000
TP=4224
ZT=0x100000; XT=0x400000; KR=0x700000
RP=2072; GP=RP*16; KP=4*GP
ST4=0x60000
FB=0x80000
FLG=0x1A000
MODF=0x16000
X1F=0xA00000; H2F=0xD00000; GF=0x1000000; X2F=0x1300000; MF=0x1600000; FSZ=20*KP; MSZ=54*KP
PW=0x3000000; PW1=PW; PW2=PW+819200; PW4=PW+1638400; PW3=0x3400000; PWSZ=376*10240; PW3SZ=180*12288
KA=dict(u=0,Are=8,Aim=16,Bre=24,Bim=32,Cre=40,Cim=48,ldt=56,dsk=64,w1=80,w2=88,w3=96,w4=104,c=112,wmod=120,out=128,dbg=136,ws=144)
def srd(a, d, base, size, off=0):
    if off: a(f"s_add_u32 s{d}, s{base}, {off}", f"s_addc_u32 s{d+1}, s{base+1}, 0")
    else: a(f"s_mov_b32 s{d}, s{base}", f"s_mov_b32 s{d+1}, s{base+1}")
    a(f"s_mov_b32 s{d+2}, {size}", f"s_mov_b32 s{d+3}, 0x00020000")
def khead(name):
    return f".globl {name}\n.p2align 8\n.type {name},@function\n{name}:\n"
def kdesc(name, vg, sg=102, acc=None):
    vg=(vg+7)//8*8
    acc = acc or vg
    return f""".p2align 6
.amdhsa_kernel {name}
  .amdhsa_next_free_vgpr {vg}
  .amdhsa_next_free_sgpr {sg}
  .amdhsa_accum_offset {acc}
  .amdhsa_group_segment_fixed_size 0
  .amdhsa_kernarg_size 152
  .amdhsa_user_sgpr_count 2
  .amdhsa_user_sgpr_kernarg_segment_ptr 1
  .amdhsa_system_sgpr_workgroup_id_x 1
.end_amdhsa_kernel
"""
def dpp_row_sum(a, r, tmp=None):
    for sh in (8,4,2,1):
        a(f"s_nop 1", f"v_add_f32_dpp v{r}, v{r}, v{r} row_ror:{sh} row_mask:0xf bank_mask:0xf")
def cmul(a, d, x, y):
    a(f"v_pk_mul_f32 v[{d}:{d+1}], v[{x}:{x+1}], v[{y}:{y+1}] op_sel:[0,0] op_sel_hi:[0,1]",
      f"v_pk_fma_f32 v[{d}:{d+1}], v[{x}:{x+1}], v[{y}:{y+1}], v[{d}:{d+1}] op_sel:[1,1,0] op_sel_hi:[1,0,1] neg_lo:[0,1,0]")
def bfr(a, r):
    a(f"v_cvt_pk_bf16_f32 v{r}, v{r}, v{r}", f"v_lshlrev_b32 v{r}, 16, v{r}")
def lds_colreduce(a, acc, kkreg, ncreg, wave_s, outreg):
    a(f"v_lshlrev_b32 v5, 8, v{kkreg}", f"v_lshl_add_u32 v5, v{ncreg}, 5, v5")
    a(f"ds_write_b128 v5, v[{acc}:{acc+3}]", f"ds_write_b128 v5, v[{acc+4}:{acc+7}] offset:16","s_waitcnt lgkmcnt(0)","s_barrier")
    a("v_and_b32 v6, 63, v0","v_lshlrev_b32 v6, 2, v6",f"s_lshl_b32 s25, s{wave_s}, 11","v_add_u32 v7, s25, v6")
    for i in range(8): a(f"ds_read_b32 v{16+i}, v7 offset:{256*i}")
    a("s_waitcnt lgkmcnt(0)")
    for i in range(1,8): a(f"v_add_f32 v16, v16, v{16+i}")
    a(f"s_lshl_b32 s25, s{wave_s}, 8","v_add_u32 v7, s25, v6","ds_write_b32 v7, v16 offset:8192","s_waitcnt lgkmcnt(0)","s_barrier")
    for i in range(4): a(f"ds_read_b32 v{16+i}, v6 offset:{8192+256*i}")
    a("s_waitcnt lgkmcnt(0)","v_add_f32 v16, v16, v17","v_add_f32 v18, v18, v19",f"v_add_f32 v{outreg}, v16, v18")
import os
TICK=int(os.environ.get("TICK","0")); DBGW=0x2000000
def tick(a,i):
    if TICK: a(f"s_memtime s[{70+2*i}:{71+2*i}]")
def tick_end(a,li,n,wsreg=4,tid=0):
    if not TICK: return
    a.n+=1; lb=f"TK{li}_{a.n}"
    a(f"s_memtime s[{70+2*n}:{71+2*n}]","s_waitcnt lgkmcnt(0)",f"v_cmp_eq_u32 vcc, {tid}, v0",f"s_cbranch_vccz {lb}","s_and_saveexec_b64 s[68:69], vcc")
    a(f"s_add_u32 s60, s{wsreg}, {DBGW+li*0x10000}", f"s_addc_u32 s61, s{wsreg+1}, 0","s_mov_b32 s62, 0x10000","s_mov_b32 s63, 0x00020000","s_lshl_b32 s64, s2, 6")
    for i in range(n+1):
        if i: a(f"s_sub_u32 s{70+2*i}, s{70+2*i}, s70")
        a(f"v_mov_b32 v250, s{70+2*i}", f"buffer_store_dword v250, off, s[60:63], s64 offset:{4*i}","s_nop 1")
    a("s_mov_b64 exec, s[68:69]", f"{lb}:")

def SC(tag):
    return " sc1" if tag in os.environ.get("SC1","").split(",") else ""
```

```python
import sys, importlib, os, re
from asmlib import *
def build(ks, out):
    mods=[importlib.import_module(k) for k in ks]
    s=""
    for m in mods: s+=f"; @launch kernel={m.NAME} grid=({m.NWG},1,1) block=({getattr(m,'BLK',256)},1,1) lds={m.LDS}\n"
    s+='.amdgcn_target "amdgcn-amd-amdhsa--gfx950"\n.text\n'
    d='.section .rodata,"a"\n'
    for m in mods:
        t,vg=m.gen()
        fl=os.environ.get("STF","")
        if fl and m.NAME[:2] in os.environ.get("STK","k1,k2,k3,k4,k5,ad").split(","):
            t=re.sub(r"(buffer_store_\w+ [^\n]*)", lambda mm: mm.group(1)+" "+fl.replace("_"," "), t)
        s+=khead(m.NAME)+t
        d+=kdesc(m.NAME,vg)
    open(out,"w").write(s+d)
if __name__=="__main__":
    build(sys.argv[2:], sys.argv[1])
```
